```python
import torch

def _softmax(x, axis=-1):
    return torch.softmax(x, dim=axis)

def _gelu(x):
    return torch.nn.functional.gelu(x, approximate='tanh')

def _silu(x):
    return torch.nn.functional.silu(x)

def _sigmoid(x):
    return torch.sigmoid(x)

def _layernorm(x, axis=-1, eps=1e-05):
    m = x.mean(dim=axis, keepdim=True)
    v = x.var(dim=axis, keepdim=True, unbiased=False)
    return (x - m) / torch.sqrt(v + eps)

def _scatter_add(tgt, idx, src, axis=0):
    return tgt.clone().index_add_(axis, idx, src)

def _segment_sum(src, seg, n):
    out = torch.zeros((n,) + src.shape[1:], dtype=src.dtype)
    return out.index_add_(0, seg, src)

def _pad(x, pw):
    flat = tuple((v for pair in reversed(pw) for v in pair))
    return torch.nn.functional.pad(x, flat)
kernel_name = 'adaLN_cond__sliding_local_dilated__mixer_channel_mlp__prompt'

def setup_inputs():

    _w = lambda a: (lambda t: t.to(torch.bfloat16) if t.is_floating_point() else t)(torch.as_tensor(a))

    def _A_setup():
        B, S, D = (1, 2048, 512)
        return {'x': _w((lambda *s: torch.randn(*s, dtype=torch.bfloat16) * 0.05)(B, S, D)), 'wqkv': _w((lambda *s: torch.randn(*s, dtype=torch.bfloat16) * 0.05)(D, 3 * D)), 'wo': _w((lambda *s: torch.randn(*s, dtype=torch.bfloat16) * 0.05)(D, D))}
    _A_in = _A_setup()

    def _B_setup():
        B, S, D, F = (1, 2048, 512, 1792)
        return {'x': _w((lambda *s: torch.randn(*s, dtype=torch.bfloat16) * 0.05)(B, S, D)), 'w1': _w((lambda *s: torch.randn(*s, dtype=torch.bfloat16) * 3.2)(D, F) * D ** (-0.5)), 'b1': _w((lambda *s: torch.randn(*s, dtype=torch.bfloat16) * 1.6)(F)), 'w2': _w((lambda *s: torch.randn(*s, dtype=torch.bfloat16) * 3.2)(F, D) * F ** (-0.5)), 'b2': _w((lambda *s: torch.randn(*s, dtype=torch.bfloat16) * 3.2)(D))}
    _B_in = _B_setup()
    return {'A_x': _A_in['x'], 'A_wqkv': _A_in['wqkv'], 'A_wo': _A_in['wo'], 'B_x': _B_in['x'], 'B_w1': _B_in['w1'], 'B_b1': _B_in['b1'], 'B_w2': _B_in['w2'], 'B_b2': _B_in['b2'], 'c': _w((lambda *s: torch.randn(*s, dtype=torch.bfloat16) * 0.2)(1, 512) * 8.0), 'w_mod': _w((lambda *s: torch.randn(*s, dtype=torch.bfloat16) * 0.2)(512, 6 * 512) * 512 ** (-0.5) * 8.0)}

def reference(A_x, A_wqkv, A_wo, B_x, B_w1, B_b1, B_w2, B_b2, c, w_mod):

    def _A_ref(x, wqkv, wo):
        B, S, D = x.shape
        H = 32
        Dh = D // H
        W, dil = (8, 2)
        qkv = (lambda x, *d: x.permute(*d))((x @ wqkv).reshape(B, S, 3, H, Dh), 2, 0, 3, 1, 4)
        q, k, v = (qkv[0], qkv[1], qkv[2])
        scale = Dh ** (-0.5)
        pos = torch.arange(S)
        off = torch.arange(W) * dil
        idx = pos[:, None] - off[None, :]
        mask = idx >= 0
        idx_c = torch.where(mask, idx, 0).reshape(-1)
        kg = k[:, :, idx_c, :].reshape(B, H, S, W, Dh)
        vg = v[:, :, idx_c, :].reshape(B, H, S, W, Dh)
        logits = torch.einsum('bhsd,bhswd->bhsw', q, kg) * scale
        logits = torch.where(mask[None, None, :, :], logits, -1000000000.0)
        attn = _softmax(logits, axis=-1)
        o = torch.einsum('bhsw,bhswd->bhsd', attn, vg)
        return (lambda x, *d: x.permute(*d))(o, 0, 2, 1, 3).reshape(B, S, D) @ wo

    def _B_ref(x, w1, b1, w2, b2):
        y = _layernorm(x, axis=-1)
        h = _gelu(torch.einsum('bsd,df->bsf', y, w1) + b1)
        return torch.einsum('bsf,fd->bsd', h, w2) + b2
    x = A_x
    mod = (_silu(c) @ w_mod).reshape(c.shape[0], 6, 1, -1)
    sa, ca, ga, sb, cb, gb = (mod[:, 0].clone(), mod[:, 1].clone(), mod[:, 2].clone(), mod[:, 3].clone(), mod[:, 4].clone(), mod[:, 5].clone())
    h = _layernorm(x, axis=-1) * (1 + ca) + sa
    x = x + ga * _A_ref(h, A_wqkv, A_wo)
    h = _layernorm(x, axis=-1) * (1 + cb) + sb
    x = x + gb * _B_ref(h, B_w1, B_b1, B_w2, B_b2)
    return x
```

```python
import re

REG_RE = re.compile(r'^(-|\|)?([vas])(?:\[(\d+):(\d+)\]|(\d+))\|?$')


def regs_of(tok):
    tok = tok.strip()
    if tok in ('vcc', 'vcc_lo', 'vcc_hi'):
        return [('s', 106), ('s', 107)]
    if tok == 'm0':
        return [('s', 124)]
    if tok in ('exec', 'exec_lo', 'exec_hi'):
        return [('s', 126), ('s', 127)]
    m = REG_RE.match(tok)
    if not m:
        return []
    k = m.group(2)
    if m.group(3) is not None:
        return [(k, i) for i in range(int(m.group(3)), int(m.group(4)) + 1)]
    return [(k, int(m.group(5)))]


TRANS = ('v_exp_f32', 'v_log_f32', 'v_rcp_f32', 'v_rsq_f32', 'v_sqrt_f32', 'v_sin_f32', 'v_cos_f32')
VCC = [('s', 106), ('s', 107)]


class Inst:
    __slots__ = ('text', 'op', 'defs', 'uses', 'kind', 'tag', 'passes', 'srcc', 'srcab', 'block', 'dpp', 'wide', 'nowaw')

    def __init__(self, text, tag=None):
        self.text = text
        self.tag = tag
        self.passes = 0
        self.srcc = []
        self.srcab = []
        self.block = None
        self.wide = []
        t = text.split(';')[0].strip()
        parts = t.split(None, 1)
        op = self.op = parts[0]
        rest = parts[1] if len(parts) > 1 else ''
        ops = [o.strip() for o in rest.split(',')] if rest else []
        mods = ''
        if ops:
            j = ','.join(ops)
            m = re.search(r'\s(op_sel|op_sel_hi|neg_lo|neg_hi|row_|quad_perm|offen|offset|sc0|sc1|nt\b|lds|clamp|mul:|div:|bound_ctrl|src0_sel|dst_sel)', j)
            if m:
                mods = j[m.start():]
                j = j[:m.start()]
            ops = [o.strip() for o in j.split(',')]
        self.dpp = ('row_' in mods or 'quad_perm' in mods)
        R = [regs_of(o) for o in ops]
        flat = lambda l: [r for x in l for r in x]
        defs, uses = [], []
        if op.startswith('v_mfma'):
            self.kind = 'mfma'
            defs = R[0]; uses = flat(R[1:4]); self.srcc = R[3]; self.srcab = R[1] + R[2]
            self.passes = 8 if '32x32' in op else 4
        elif op.startswith('buffer_load') or op.startswith('global_load'):
            self.kind = 'vmem'
            if re.search(r'\blds\b', mods):
                uses = flat(R) + [('s', 124)]
            else:
                defs = R[0]; uses = flat(R[1:])
                if 'd16' in op:
                    uses = uses + R[0]
        elif op.startswith('buffer_store') or op.startswith('global_store'):
            self.kind = 'vmem'
            uses = flat(R)
            if 'x3' in op or 'x4' in op:
                self.wide = R[0] if op.startswith('buffer') else R[1]
        elif op.startswith('ds_read'):
            self.kind = 'ds'; defs = R[0]; uses = flat(R[1:])
        elif op.startswith('ds_write'):
            self.kind = 'ds'; uses = flat(R)
        elif op.startswith('s_load') or op in ('s_memtime', 's_memrealtime'):
            self.kind = 'smem'; defs = R[0]; uses = flat(R[1:])
        elif op.startswith('v_'):
            self.kind = 'valu'
            if 'swap' in op:
                defs = R[0] + R[1]; uses = R[0] + R[1]
            else:
                defs = list(R[0]); uses = flat(R[1:])
                if op.startswith(('v_fmac', 'v_dot2c', 'v_mac', 'v_pk_fmac', 'v_writelane')) or self.dpp:
                    uses = uses + R[0]
                if op.startswith('v_cndmask') and len(ops) == 3:
                    uses = uses + VCC
                if '_co_' in op:
                    defs = R[0] + R[1]; uses = flat(R[2:])
        elif op.startswith('s_'):
            self.kind = 'salu'
            if op.startswith(('s_cmp', 's_bitcmp', 's_cbranch', 's_branch', 's_barrier', 's_nop', 's_waitcnt', 's_endpgm', 's_setprio', 's_sleep')):
                uses = flat(R)
                if 'vcc' in op:
                    uses = uses + VCC
            else:
                defs = list(R[0]) if R else []; uses = flat(R[1:])
                if 'saveexec' in op:
                    defs += regs_of('exec'); uses += regs_of('exec')
        else:
            raise ValueError('unknown op ' + text)
        self.defs = defs
        self.uses = uses


class Prog:
    def __init__(self):
        self.items = []
        self.nlab = 0
        self.blk = None
        self.nblk = 0

    def __call__(self, text, tag=None):
        for line in text.strip().split('\n'):
            line = line.strip()
            if not line or line.startswith(';'):
                continue
            i = Inst(line, tag)
            i.block = self.blk
            self.items.append(i)

    def add(self, x):
        if isinstance(x, str):
            self(x)
        elif isinstance(x, tuple) and x[0] == 'I':
            self(x[1], tag=x[2])
        elif isinstance(x, (list,)):
            for y in x:
                self.add(y)
        else:
            self.items.append(x)

    def newlab(self, base='L'):
        self.nlab += 1
        return f'{base}_{self.nlab}'

    def label(self, name):
        self.items.append(('label', name))

    def comment(self, s):
        self.items.append(('comment', s))

    def wait(self, *tags):
        self.items.append(('wait', tags))

    def wait_all(self, vm=True, lg=True):
        s = 's_waitcnt' + (' vmcnt(0)' if vm else '') + (' lgkmcnt(0)' if lg else '')
        self(s)

    def save(self, name):
        self.items.append(('save', name))

    def restore(self, name):
        self.items.append(('restore', name))

    def reset(self):
        self.items.append(('reset',))

    def begin_cond(self, group=None):
        self.nblk += 1
        self.blk = group or f'b{self.nblk}'
        self.items.append(('open', self.blk))

    def end_cond(self):
        self.items.append(('close', self.blk))
        self.blk = None

    def finalize(self, check=True):
        out = []
        vmq, lgq = [], []
        smem = set()
        openblk = None
        snaps = {}
        hist = []
        self.state = 0
        self.mfree = 0
        stats = {'nop': 0, 'wait': 0, 'n': 0}

        def emit_inst(i):
            out.append('\t' + i.text)
            if i.kind == 'mfma':
                self.state = max(self.state, self.mfree)
                self.mfree = self.state + i.passes - 1
            hist.append((self.state, i))
            while hist and hist[0][0] < self.state - 24:
                del hist[0]
            if i.op == 's_nop':
                self.state += int(i.text.split()[1]) + 1
            else:
                self.state += 1
            stats['n'] += 1

        def count_after(q, idx):
            x = q[idx]
            return sum(1 for y in q[idx + 1:] if y.block is None or y.block == x.block or y.block == openblk)

        def do_wait(vi, li, sm):
            parts = []
            if vi is not None:
                n = min(count_after(vmq, vi), 63)
                parts.append(f'vmcnt({n})')
                del vmq[:vi + 1]
            if sm:
                parts.append('lgkmcnt(0)')
                lgq.clear(); smem.clear()
            elif li is not None:
                if smem:
                    parts.append('lgkmcnt(0)')
                    lgq.clear(); smem.clear()
                else:
                    n = min(count_after(lgq, li), 15)
                    parts.append(f'lgkmcnt({n})')
                    del lgq[:li + 1]
            if parts:
                emit_inst(Inst('s_waitcnt ' + ' '.join(parts)))
                stats['wait'] += 1

        def need_states(i):
            need = 0
            U = set(i.uses); D = set(i.defs)
            for st, p in hist:
                dist = self.state - st - 1
                if p.op == 's_nop':
                    continue
                req = 0
                PD = set(p.defs)
                if p.kind == 'valu':
                    vd = {r for r in PD if r[0] in 'va'}
                    sd = {r for r in PD if r[0] == 's'}
                    if i.kind == 'mfma' and vd & U:
                        req = max(req, 2)
                    if i.kind == 'valu':
                        if i.dpp and vd & U: req = max(req, 2)
                        if 'permlane' in i.op and vd & U: req = max(req, 2)
                        if i.op.startswith(('v_readlane', 'v_readfirstlane')) and vd & U: req = max(req, 1)
                        if p.op.startswith(TRANS) and vd & U: req = max(req, 1)
                        if sd & U: req = max(req, 4 if i.op.startswith(('v_readlane', 'v_writelane')) else 2)
                        if 'sdwa' in p.op and vd & (U | D): req = max(req, 1)
                    if p.op.startswith('v_dot'):
                        if vd & (U | D) and i.kind in ('valu', 'mfma', 'vmem', 'ds'):
                            same = (i.op == p.op)
                            if same and not (vd & set(i.uses[:-len(p.defs)] if not i.op.startswith('v_dot2c') else i.uses[:-1])):
                                pass
                            else:
                                req = max(req, 3)
                    if i.kind == 'vmem' and sd & U: req = max(req, 5)
                    if ('s', 126) in sd:
                        if i.kind == 'mfma' or 'permlane' in i.op or i.op.startswith(('v_readlane', 'v_readfirstlane')): req = max(req, 4)
                        if i.dpp: req = max(req, 5)
                if p.kind == 'salu' and ('s', 124) in PD and i.kind == 'vmem' and ('s', 124) in U:
                    req = max(req, 1)
                if p.kind == 'vmem' and p.wide and set(p.wide) & D:
                    req = max(req, 2)
                if p.kind == 'mfma':
                    n = {4: 8, 8: 12}[p.passes]
                    if i.kind == 'mfma':
                        if PD & set(i.srcab): req = max(req, n)
                        if PD & set(i.srcc):
                            if not (p.defs == i.srcc and p.passes == i.passes):
                                req = max(req, n - 2)
                        elif PD & D:
                            req = max(req, n)
                    elif i.kind in ('valu', 'vmem', 'ds'):
                        if PD & (U | D): req = max(req, n)
                        if i.kind == 'valu' and set(p.srcc) & D: req = max(req, p.passes - 1)
                need = max(need, req - dist)
            return need

        for it in self.items:
            if isinstance(it, tuple):
                k = it[0]
                if k == 'label':
                    out.append(it[1] + ':')
                elif k == 'comment':
                    out.append('\t; ' + it[1])
                elif k == 'open':
                    openblk = it[1]
                    saved = (list(hist), self.state, list(vmq), list(lgq), set(smem))
                elif k == 'close':
                    openblk = None
                    hist.extend((st + self.state - saved[1], p) for st, p in saved[0])
                    hist.sort(key=lambda e: e[0])
                    for q, old in ((vmq, saved[2]), (lgq, saved[3])):
                        keep = [x for x in old if x.block != it[1] or any(x is y for y in q)]
                        new = [y for y in q if not any(y is x for x in old)]
                        q[:] = keep + new
                    smem.update(saved[4])
                elif k == 'reset':
                    vmq.clear(); lgq.clear(); smem.clear()
                elif k == 'wait':
                    vi = max([n for n, x in enumerate(vmq) if x.tag in it[1]], default=None)
                    li = max([n for n, x in enumerate(lgq) if x.tag in it[1]], default=None)
                    do_wait(vi, li, False)
                elif k == 'save':
                    snaps[it[1]] = (list(vmq), list(lgq), set(smem), list(hist), self.state)
                elif k == 'restore':
                    a, b, c, d, e = snaps[it[1]]
                    vmq[:] = a; lgq[:] = b; smem.clear(); smem.update(c)
                    hist[:] = [(st + self.state - e, pp) for st, pp in d]
                    self.mfree = 0
                elif k == 'raw':
                    out.append(it[1])
                continue
            i = it
            touch = set(i.uses) | set(i.defs)
            if i.op == 's_waitcnt':
                m = re.search(r'vmcnt\((\d+)\)', i.text)
                if m:
                    n = int(m.group(1))
                    assert n == 0, 'explicit counted waits are not tracked'
                    vmq.clear()
                m = re.search(r'lgkmcnt\((\d+)\)', i.text)
                if m:
                    assert int(m.group(1)) == 0
                    lgq.clear(); smem.clear()
                emit_inst(i)
                continue
            vi = li = None
            for n, x in enumerate(vmq):
                xd = set(x.defs)
                if xd & set(i.uses) or (xd & set(i.defs) and i.kind != 'vmem'):
                    vi = n
            for n, x in enumerate(lgq):
                xd = set(x.defs)
                if xd & set(i.uses) or (xd & set(i.defs) and i.kind != 'ds'):
                    li = n
            sm = bool(smem & touch)
            do_wait(vi, li, sm)
            n = need_states(i)
            while n > 0:
                k = min(n, 8)
                emit_inst(Inst(f's_nop {k - 1}'))
                stats['nop'] += k
                n -= k
            emit_inst(i)
            if i.kind == 'vmem':
                vmq.append(i)
            elif i.kind == 'ds':
                lgq.append(i)
            elif i.kind == 'smem':
                smem.update(i.defs)
                smem.add(('smem', 0))
        self.stats = stats
        return '\n'.join(out) + '\n'


def weave(main, fill, start=0, end=None):
    end = len(main) if end is None else end
    n = end - start
    out = []
    k = 0
    for i, m in enumerate(main):
        out.append(m)
        if start <= i < end:
            upto = (len(fill) * (i - start + 1) + n - 1) // n
            while k < upto:
                out.append(fill[k]); k += 1
    out.extend(fill[k:])
    return out
```

```python
from gen import *

L_X1 = 133120
L_RB = [59392, 0]
ASLOT = [0, 32768, 65536, 0]
P1C = -2.0 * 0.7978845608028654 * LOG2E
P3C = P1C * 0.044715


def unpack(l, dst, src, n):
    for e in range(n):
        l.append(f'v_lshlrev_b32 v{dst+2*e}, 16, v{src+e}')
        l.append(f'v_and_b32 v{dst+2*e+1}, {S_HI}, v{src+e}')


def flag(g, sc, sregs, base):
    p = g.p
    first = True
    for s, sh in sregs:
        p(f's_lshl_b32 {T0 if first else T1}, {s}, {sh}')
        if not first:
            p(f's_add_u32 {T0}, {T0}, {T1}')
        first = False
    p(f's_add_u32 {T0}, {T0}, {base}')
    p(f'v_mov_b32 v4, {T0}')


def w1_tr(rnd):
    l = []
    for k in range(16):
        ks = 16 * rnd + k
        jj, pp, gg = (k >> 2), (k >> 1) & 1, k & 1
        for t in range(2):
            l.append(f'ds_read_b64_tr_b16 {v(128+4*ks+2*t,2)}, v8 offset:{(8*jj+4*pp+2*t+gg)*1024}')
    return l


def uvt(rnd, rb):
    rd = [f'ds_read_b128 {v(rb+4*(k&3),4)}, v9 offset:{32*(16*rnd+k)}' for k in range(16)]
    l = rd[:3]
    for k in range(16):
        ks = 16 * rnd + k
        if k + 3 < 16:
            l.append(rd[k + 3])
        l.append(f'v_mfma_f32_16x16x32_bf16 v[124:127], {v(rb+4*(k&3),4)}, {v(128+4*ks,4)}, {"v[124:127]" if ks else 0}')
    return l


def wo_tr(ks, nt):
    f = 64 + ((ks & 7) * 4 + nt) * 4
    return [f'ds_read_b64_tr_b16 {a(f+2*t,2)}, {"v7" if nt & 2 else "v6"} offset:{4*ks*BLK + 512*t + 32*(nt&1)}' for t in range(2)]


def w2_dma(g, R, lds):
    l = []
    for b in range(14):
        l += g.dma('v10', sW2, S_M0, lds + b * BLK, (f's_mov_b32 {T0}, {(14*R+b)*8192}', T0), tag=f'w2r{R}')
    return l


def w2_tr(R):
    l = []
    for k in range(7):
        for nt in range(2):
            f = ((7 * R + k) * 2 + nt) * 4
            for t in range(2):
                l.append(f'ds_read_b64_tr_b16 {a(f+2*t,2)}, {"v12" if nt else "v11"} offset:{(2*k+t)*BLK}')
    return l


def finish(g, sfx):
    p = g.p
    p.label('FIN' + sfx)
    if g.ts_on:
        g.ts(15)
        p('s_waitcnt lgkmcnt(0)')
        p('v_mov_b32 v1, 0')
        for i in range(16):
            p(f'v_writelane_b32 v1, s{TS0+2*i}, {i}')
        p(f's_lshl_b32 {T0}, {S_Q}, 3')
        p(f's_add_u32 {T0}, {T0}, {S_XG}')
        p(f's_lshl_b32 {T0}, {T0}, 2')
        p(f's_add_u32 {T0}, {T0}, {S_W}')
        p(f's_lshl_b32 {T0}, {T0}, 6')
        p(f's_add_u32 {T0}, {T0}, {WS_TS}')
        p('v_and_b32 v2, 15, v0')
        p('v_cmp_gt_u32 vcc, 16, v0')
        p(f'v_lshl_add_u32 v2, v2, 2, {T0}')
        p('v_bfrev_b32 v3, 1')
        p('v_cndmask_b32 v2, v3, v2, vcc')
        p(f'buffer_store_dword v1, v2, {sWS}, 0 offen')
    p('s_endpgm')


def tail(g, sc, sfx):
    p = g.p
    p(f'buffer_store_dwordx4 v[160:163], v47, {sWS}, 0 offen{sc}')
    p(f'buffer_store_dwordx4 v[164:167], v47, {sWS}, {T3} offen{sc}')
    p(f'v_mov_b32 v3, {S_NON}')
    flag(g, sc, [(S_RG, 7), (S_J, 4), (S_W, 2)], WS_F1)
    p('v_lshrrev_b32 v21, 4, v0')
    p(f'v_mul_u32_u24 v48, {BLK}, v21')
    p('v_mov_b32 v49, 0')
    g.traddr('v6', 'v52', 'v51', 'v48', 'v49')
    p('v_sub_u32 v7, v6, v48')
    p('v_xor_b32 v7, 64, v7')
    p('v_add_u32 v7, v7, v48')
    p('s_waitcnt vmcnt(0)')
    p(f'buffer_store_dword v3, v4, {sWS}, 0 offen{sc}')
    g.ts(4)
    if g.stop <= 1:
        p(f's_branch FIN{sfx}')
    g.recheck(g.rest_ld, ['v193', 'v195', 'v197', 'v199'])
    p(f's_cmp_eq_u32 {S_W}, 2')
    p(f's_cselect_b32 {T3}, 1.0, 0')
    l = []
    for i in range(2):
        for e in range(2):
            l.append(f'v_lshlrev_b32 v{52+4*i+2*e}, 16, v{192+4*i+2*e}')
            l.append(f'v_and_b32 v{53+4*i+2*e}, {S_HI}, v{192+4*i+2*e}')
    for e in range(8):
        l.append(f'v_add_f32 v{52+e}, {T3}, v{52+e}')
    for e in range(4):
        l.append(f'v_cvt_pk_bf16_f32 v{52+e}, v{52+2*e}, v{53+2*e}')
    p.add(l)
    p('v_lshrrev_b32 v48, 3, v0')
    p('v_lshlrev_b32 v48, 6, v48')
    p('v_and_b32 v49, 3, v0')
    p('v_lshl_add_u32 v48, v49, 4, v48')
    p('v_bfe_u32 v49, v0, 2, 1')
    p('v_lshl_add_u32 v48, v49, 3, v48')
    p(f's_lshl_b32 {T0}, {S_W}, 10')
    p(f's_add_u32 {T0}, {T0}, {L_TB}')
    p(f'v_add_u32 v48, {T0}, v48')
    p('ds_write_b64 v48, v[52:53]')
    p('ds_write_b64 v48, v[54:55] offset:512')
    p(f's_cmp_lt_u32 {S_W}, 2')
    p(f's_cselect_b32 {T1}, 0x3f803f80, 0')
    p(f's_lshl_b32 {T0}, {S_W}, 9')
    p(f's_add_u32 {T0}, {T0}, {L_TB + 4096}')
    p(f'v_lshl_add_u32 v49, v0, 3, {T0}')
    p(f'v_mov_b32 v56, {T1}')
    p(f'v_mov_b32 v57, {T1}')
    p('ds_write_b64 v49, v[56:57]')
    p(f's_and_b32 {T0}, {S_W}, 1')
    p(f's_lshl_b32 {T0}, {T0}, 5')
    p(f's_lshr_b32 {T1}, {S_W}, 1')
    p(f's_add_u32 {T0}, {T0}, {T1}')
    p(f's_add_u32 {T0}, {T0}, {S_R0}')
    p('v_and_b32 v22, 15, v0')
    p(f'v_lshl_add_u32 v48, v22, 1, {T0}')
    p('v_lshlrev_b32 v48, 10, v48')
    p('v_lshl_add_u32 v48, v21, 3, v48')
    p(f's_lshl_b32 {T0}, {S_J}, 7')
    for nt in range(4):
        p(f'buffer_load_dwordx2 {v(32+2*nt,2)}, v48, {sX}, {T0} offen offset:{32*nt}')
    p(f's_lshl_b32 {T1}, {S_S14}, 8')
    p(f's_lshl_b32 {T2}, {S_W}, 6')
    p(f's_add_u32 {T1}, {T1}, {T2}')
    p('v_and_b32 v49, 31, v0')
    p(f'v_lshl_add_u32 v49, v49, 1, {T1}')
    p(f'buffer_load_ushort a248, v49, {sB1}, 0 offen')
    p('v_lshrrev_b32 v23, 5, v0')
    p(f's_lshl_b32 {T2}, {S_W}, 5')
    p(f'v_lshl_add_u32 v49, v23, 3, {T2}')
    p(f'buffer_load_dwordx2 a[244:245], v49, {sB2}, {T0} offen')
    p(f'buffer_load_dwordx2 a[246:247], v49, {sB2}, {T0} offen offset:16')
    p('v_and_b32 v49, 31, v0')
    p(f's_lshl_b32 {T0}, {S_RG}, 7')
    p(f's_add_u32 {T0}, {T0}, {WS_F1}')
    p(f'v_lshl_add_u32 v13, v49, 2, {T0}')
    f1 = f'buffer_load_dword v4, v13, {sWS}, 0 offen sc1'
    p(f1)
    p('v_and_b32 v49, 1, v21')
    p(f's_and_b32 {T0}, {S_W}, 1')
    p(f's_lshl_b32 {T0}, {T0}, 1')
    p(f'v_add_u32 v49, {T0}, v49')
    p(f's_lshr_b32 {T0}, {S_W}, 1')
    p(f's_lshl_b32 {T0}, {T0}, 15')
    p(f's_add_u32 {T0}, {T0}, {L_W1}')
    p(f'v_lshl_add_u32 v51, v23, 9, {T0}')
    g.traddr('v8', 'v52', 'v53', 'v51', 'v49')
    p('v_and_b32 v49, 3, v0')
    p('v_lshlrev_b32 v51, 2, v49')
    p(f's_mov_b32 {T0}, 0x5412')
    p(f'v_lshrrev_b32 v51, v51, {T0}')
    p('v_and_b32 v51, 7, v51')
    p('v_lshrrev_b32 v52, 2, v0')
    p('v_xor_b32 v52, v52, v21')
    p('v_and_b32 v52, 1, v52')
    p('v_cmp_eq_u32 vcc, 0, v52')
    p('v_cndmask_b32 v51, 5, v51, vcc')
    p('v_lshlrev_b32 v51, 10, v51')
    p('v_lshl_add_u32 v51, v23, 4, v51')
    p(f'v_add_u32 v9, {L_TB}, v51')
    p('s_waitcnt lgkmcnt(0)')
    p('s_barrier')
    p.add(w1_tr(0))
    for ks in range(8):
        for nt in range(4):
            p.add(wo_tr(ks, nt))
    g.recheck([f1], ['v4'])
    g.ts(5)
    p(f's_lshl_b32 {T0}, {S_RG}, 2')
    p(f's_add_u32 {T0}, {T0}, {S_W}')
    p(f's_lshl_b32 {T0}, {T0}, 14')
    p(f's_add_u32 {T0}, {T0}, {WS_O}')
    for ks in range(16):
        if ks and ks % 4 == 0:
            p(f's_add_u32 {T0}, {T0}, 4096')
        p(f'buffer_load_dwordx4 {a(4*ks,4)}, v5, {sWS}, {T0} offen offset:{1024*(ks&3)} sc1')
    p('s_waitcnt lgkmcnt(0)')
    p('s_barrier')
    p.add(g.w1_dma(1))
    p.add(g.touch(sW2, 1))
    p(f's_lshl_b32 {T0}, {S_J}, 7')
    p(f's_add_u32 {T0}, {T0}, {L_TB}')
    p(f'v_lshl_add_u32 v49, v21, 4, {T0}')
    for dst, row in ((40, 0), (56, 2), (72, 1)):
        for pp in range(2):
            p(f'ds_read_b128 {v(dst+8*pp+4,4)}, v49 offset:{1024*row + 64*pp}')
    p(f's_lshr_b32 {T1}, {S_W}, 1')
    p(f's_lshl_b32 {T1}, {T1}, 6')
    p(f's_add_u32 {T0}, {T0}, {T1}')
    p(f's_and_b32 {T1}, {S_W}, 1')
    p(f's_lshl_b32 {T1}, {T1}, 3')
    p(f's_add_u32 {T0}, {T0}, {T1}')
    p(f'v_lshl_add_u32 v16, v23, 4, {T0}')
    p('ds_read_b64 a[240:241], v16 offset:3072')
    p('ds_read_b64 a[242:243], v16 offset:3104')
    p('v_lshrrev_b32 v16, 1, v21')
    p('v_lshlrev_b32 v1, 10, v16')
    p('v_and_b32 v16, 1, v21')
    p('v_lshl_add_u32 v1, v16, 9, v1')
    p('v_lshl_add_u32 v1, v22, 4, v1')
    p(f's_lshl_b32 {T0}, {S_RG}, 1')
    p(f's_lshr_b32 {T1}, {S_W}, 1')
    p(f's_add_u32 {T0}, {T0}, {T1}')
    p(f's_lshl_b32 {T0}, {T0}, 15')
    p(f's_lshl_b32 {T1}, {S_J}, 12')
    p(f's_add_u32 {T0}, {T0}, {T1}')
    p(f's_and_b32 {T1}, {S_W}, 1')
    p(f's_lshl_b32 {T1}, {T1}, 8')
    p(f's_add_u32 {T0}, {T0}, {T1}')
    p(f's_add_u32 {T0}, {T0}, {WS_XG}')
    p(f'v_add_u32 v1, {T0}, v1')
    p(f's_lshl_b32 {T0}, {S_RG}, 3')
    p(f's_add_u32 {T0}, {T0}, {S_J}')
    p(f's_lshl_b32 {T0}, {T0}, 11')
    p(f's_lshl_b32 {T1}, {S_W}, 8')
    p(f's_add_u32 {T0}, {T0}, {T1}')
    p(f's_add_u32 {T0}, {T0}, {WS_ST}')
    p(f'v_lshl_add_u32 v13, v22, 4, {T0}')
    p('v_lshrrev_b32 v16, 5, v0')
    p('v_lshl_add_u32 v13, v16, 10, v13')
    l = []
    unpack(l, 24, 32, 8)
    for dst in (40, 48, 56, 64, 72, 80):
        unpack(l, dst, dst + 4, 4)
    p.add(l)
    p.add(uvt(0, 104))
    flag(g, sc, [(S_RG, 7), (S_J, 3)], WS_F2)
    p(f's_lshr_b32 {T0}, {S_W}, 1')
    p(f's_lshl_b32 {T0}, {T0}, 6')
    p(f's_and_b32 {T1}, {S_W}, 1')
    p(f's_lshl_b32 {T1}, {T1}, 2')
    p(f's_add_u32 {T0}, {T0}, {T1}')
    p(f'v_add_u32 v4, {T0}, v4')
    for ks in range(16):
        for nt in range(4):
            f = 64 + ((ks & 7) * 4 + nt) * 4
            p(f'v_mfma_f32_16x16x32_bf16 {v(88+4*nt,4)}, {a(f,4)}, {a(4*ks,4)}, {v(88+4*nt,4) if ks else 0}')
            if ks < 8:
                p.add(wo_tr(ks + 8, nt))
    g.ts(6)
    for e in range(0, 16, 2):
        p(f'v_pk_fma_f32 {v(24+e,2)}, {v(88+e,2)}, {v(40+e,2)}, {v(24+e,2)}')
    for e in range(0, 16, 2):
        p(f'v_pk_mul_f32 {v(104+e,2)}, {v(24+e,2)}, {v(56+e,2)}')
    for e in range(8):
        p(f'v_cvt_pk_bf16_f32 v{88+e}, v{104+2*e}, v{105+2*e}')
    p(f'buffer_store_dwordx4 v[88:91], v1, {sWS}, 0 offen{sc}')
    p(f'buffer_store_dwordx4 v[92:95], v1, {sWS}, 0 offen offset:2048{sc}')
    S = [16, 18, 20, 22, 120, 122]
    for e in range(0, 16, 2):
        x1, xg, gg, sb = v(24 + e, 2), v(104 + e, 2), v(56 + e, 2), v(72 + e, 2)
        if e == 0:
            p(f'v_pk_mul_f32 {v(S[1],2)}, {x1}, {x1}')
            p(f'v_pk_mul_f32 {v(S[3],2)}, {xg}, {xg}')
            p(f'v_pk_mul_f32 {v(S[4],2)}, {xg}, {gg}')
            p(f'v_pk_mul_f32 {v(S[5],2)}, {xg}, {sb}')
            continue
        p(f'v_pk_add_f32 {v(S[0],2)}, {x1}, {v(24,2) if e == 2 else v(S[0],2)}')
        p(f'v_pk_fma_f32 {v(S[1],2)}, {x1}, {x1}, {v(S[1],2)}')
        p(f'v_pk_add_f32 {v(S[2],2)}, {xg}, {v(104,2) if e == 2 else v(S[2],2)}')
        p(f'v_pk_fma_f32 {v(S[3],2)}, {xg}, {xg}, {v(S[3],2)}')
        p(f'v_pk_fma_f32 {v(S[4],2)}, {xg}, {gg}, {v(S[4],2)}')
        p(f'v_pk_fma_f32 {v(S[5],2)}, {xg}, {sb}, {v(S[5],2)}')
    for k in range(6):
        p(f'v_add_f32 v{96+k}, v{S[k]}, v{S[k]+1}')
    for k in range(3):
        p(f'v_permlane32_swap_b32 v{96+2*k}, v{97+2*k}')
    for k in range(3):
        p(f'v_add_f32 v{16+k}, v{96+2*k}, v{97+2*k}')
    for k in range(3):
        p(f'v_mov_b32 v{20+k}, v{16+k}')
    for k in range(3):
        p(f'v_permlane16_swap_b32 v{16+k}, v{20+k}')
    for k in range(3):
        p(f'v_add_f32 v{16+k}, v{16+k}, v{20+k}')
    p(f'buffer_store_dwordx4 v[16:19], v13, {sWS}, 0 offen{sc}')
    g.wswz('v10', 'v40', 1024)
    p(f's_lshl_b32 {T0}, {S_J}, 7')
    p(f's_mul_i32 {T1}, {S_W}, {448*1024}')
    p(f's_add_u32 {T0}, {T0}, {T1}')
    p(f'v_add_u32 v10, {T0}, v10')
    p('v_lshrrev_b32 v40, 4, v0')
    p('v_and_b32 v40, 1, v40')
    p(f'v_xor_b32 v40, {S_W}, v40')
    p('v_lshrrev_b32 v41, 5, v0')
    p('v_lshlrev_b32 v41, 9, v41')
    g.traddr('v11', 'v42', 'v43', 'v41', 'v40')
    p('v_xor_b32 v12, 64, v11')
    p(f's_mul_i32 {S_M0}, {S_W}, {14*BLK}')
    p(f's_add_u32 {T0}, {S_M0}, {L_W2}')
    p(f'v_add_u32 v11, {T0}, v11')
    p(f'v_add_u32 v12, {T0}, v12')
    p(f's_lshl_b32 {T0}, {S_W}, 10')
    p(f's_add_u32 {T0}, {T0}, {L_X1}')
    p(f'v_add_u32 v40, {T0}, v5')
    p('v_bfe_u32 v41, v0, 4, 1')
    p('v_lshlrev_b32 v41, 10, v41')
    p('v_lshrrev_b32 v42, 5, v0')
    p('v_lshl_add_u32 v41, v42, 8, v41')
    p('v_and_b32 v42, 15, v0')
    p('v_lshl_add_u32 v41, v42, 4, v41')
    p(f's_lshl_b32 {T0}, {S_W}, 12')
    p(f's_add_u32 {T0}, {T0}, {L_X1}')
    p(f'v_add_u32 v41, {T0}, v41')
    p(f's_lshl_b32 {T0}, {S_RGB}, 7')
    p(f's_add_u32 {T0}, {T0}, {WS_F2}')
    p(f'v_lshl_add_u32 v13, v0, 2, {T0}')
    p('s_waitcnt vmcnt(0)')
    p(f'buffer_store_dword v3, v4, {sWS}, 0 offen{sc}')
    g.ts(7)
    if g.stop <= 2:
        p(f's_branch FIN{sfx}')
    f2 = f'buffer_load_dword v4, v13, {sWS}, 0 offen sc1'
    p('s_barrier')
    p(f2)
    for nt in range(4):
        p(f'ds_write_b128 v40, {v(24+4*nt,4)} offset:{4096*nt}')
    p.add(w1_tr(1))
    p(f'v_add_u32 v42, {L_TB}, v5')
    p('ds_read_b128 v[44:47], v42 offset:2048')
    p('ds_read_b128 v[48:51], v42 offset:1024')
    p('s_waitcnt lgkmcnt(0)')
    p('s_barrier')
    for rt in range(2):
        for ii in range(2):
            p(f'ds_read_b128 {v(24+8*rt+4*ii,4)}, v41 offset:{2048*rt + 512*ii}')
    p(f's_cmp_ge_u32 {S_Q}, 28')
    p.save('idle' + sfx)
    p(f's_cbranch_scc1 IDLE{sfx}')
    g.recheck([f2], ['v4'])
    g.ts(8)
    p(f's_lshl_b32 {T2}, {S_W}, 13')
    p(f'v_add_u32 v21, {T2}, v5')
    p(f's_lshl_b32 {T3}, {S_RGB}, 16')
    p(f's_add_u32 {T3}, {T3}, {WS_XG}')

    def a_dma(i):
        l = []
        for hf in range(2):
            l.append(f's_lshl_b32 {T2}, {S_W}, 13')
            l.append(f's_add_u32 m0, {T2}, {ASLOT[i] + 4096*hf}')
            l.append(f's_add_u32 {T1}, {T3}, {32768*i + 4096*hf}')
            for k in range(4):
                l.append(('I', f'buffer_load_dwordx4 v21, {sWS}, {T1} offen offset:{1024*k} sc1 lds', f'A{i}'))
        return l
    p.add(a_dma(0))
    p(f's_lshr_b32 {T0}, {S_W}, 1')
    p(f's_add_u32 {T0}, {T0}, {S_RGB}')
    p(f's_lshl_b32 {T0}, {T0}, 14')
    p(f's_and_b32 {T1}, {S_W}, 1')
    p(f's_lshl_b32 {T1}, {T1}, 9')
    p(f's_add_u32 {T0}, {T0}, {T1}')
    p(f's_add_u32 {T0}, {T0}, {WS_ST}')
    p('v_and_b32 v18, 31, v0')
    p('v_lshlrev_b32 v18, 4, v18')
    p('v_lshrrev_b32 v22, 5, v0')
    p('v_lshl_add_u32 v22, v22, 10, v18')
    STR = [56, 60, 64, 68, 96, 100, 104, 108]
    for jj in range(8):
        if jj and jj % 2 == 0:
            p(f's_add_u32 {T0}, {T0}, 4096')
        p(f'buffer_load_dwordx4 {v(STR[jj],4)}, v22, {sWS}, {T0} offen offset:{2048*(jj&1)} sc1')
    p.add(a_dma(1))
    p.add(uvt(1, 72))
    p(f's_mov_b32 {T0}, 0x3f803f80')
    for e in range(4):
        c = lambda k: v(72 + k) if e else '0'
        p(f'v_dot2_f32_bf16 v72, v{44+e}, {T0}, {c(0)}')
        p(f'v_dot2_f32_bf16 v73, v{44+e}, v{44+e}, {c(1)}')
        p(f'v_dot2_f32_bf16 v74, v{48+e}, {T0}, {c(2)}')
        p(f'v_dot2_f32_bf16 v75, v{48+e}, v{48+e}, {c(3)}')
        p(f'v_dot2_f32_bf16 v76, v{44+e}, v{48+e}, {c(4)}')
    for rr in (8, 4, 2, 1):
        for k in range(5):
            p(f'v_add_f32_dpp v{72+k}, v{72+k}, v{72+k} row_ror:{rr} row_mask:0xf bank_mask:0xf')
    for op in ('16', '32'):
        for k in range(5):
            p(f'v_mov_b32 v{80+k}, v{72+k}')
        for k in range(5):
            p(f'v_permlane{op}_swap_b32 v{72+k}, v{80+k}')
        for k in range(5):
            p(f'v_add_f32 v{72+k}, v{72+k}, v{80+k}')
    for k, s in enumerate((S_CG, S_CGG, S_CS, S_CSS, S_CGS)):
        p(f'v_readfirstlane_b32 {s}, v{72+k}')
    p('v_accvgpr_read_b32 v127, a248')
    p('v_lshlrev_b32 v127, 16, v127')
    p('v_cvt_pk_bf16_f32 v72, v124, v125')
    p('v_cvt_pk_bf16_f32 v73, v126, v127')
    p('v_lshlrev_b32 v74, 16, v72')
    p(f'v_and_b32 v75, {S_HI}, v72')
    p('v_lshlrev_b32 v76, 16, v73')
    p('v_sub_f32 v74, v124, v74')
    p('v_sub_f32 v75, v125, v75')
    p('v_sub_f32 v76, v126, v76')
    p('v_cvt_pk_bf16_f32 v74, v74, v75')
    p('v_cvt_pk_bf16_f32 v75, v76, 0')
    p(f'v_cndmask_b32 v124, v72, v74, {S_HALF}')
    p(f'v_cndmask_b32 v125, v73, v75, {S_HALF}')
    p(f'v_cndmask_b32 v126, v72, 0, {S_HALF}')
    p(f'v_cndmask_b32 v127, v73, 0, {S_HALF}')
    p('v_add_u32 v16, 65536, v5')
    p(f'v_add_u32 v17, {L_CF}, v5')
    p(f'v_add_u32 v18, {L_SC}, v18')
    p(f's_mul_i32 {T0}, {S_RGB}, {2*114688}')
    p(f's_lshl_b32 {T1}, {S_S14}, 13')
    p(f's_add_u32 {T0}, {T0}, {T1}')
    p(f's_lshl_b32 {T1}, {S_W}, 11')
    p(f's_add_u32 {T0}, {T0}, {T1}')
    p(f's_add_u32 {T0}, {T0}, {WS_HH}')
    p(f'v_add_u32 v19, {T0}, v5')
    flag(g, sc, [(S_RGB, 9), (S_S14, 4), (S_W, 2)], WS_F3)
    p('v_mov_b32 v20, v4')
    p(f's_lshl_b32 {T0}, {S_W}, 10')
    p(f'v_add_u32 v22, {T0}, v17')
    p(f's_lshl_b32 {T0}, {S_W}, 9')
    p(f'v_add_u32 v23, {T0}, v18')
    p.wait('A0')
    p('s_waitcnt lgkmcnt(0)')
    p('s_barrier')
    g.ts(9)

    st = []
    for k in range(3):
        for x, y in ((0, 1), (2, 3), (4, 5), (6, 7)):
            st.append(f'v_add_f32 v{STR[x]+k}, v{STR[x]+k}, v{STR[y]+k}')
    for k in range(3):
        st.append(f'v_add_f32 v{STR[0]+k}, v{STR[0]+k}, v{STR[2]+k}')
        st.append(f'v_add_f32 v{STR[4]+k}, v{STR[4]+k}, v{STR[6]+k}')
    for k in range(3):
        st.append(f'v_add_f32 v{56+k}, v{STR[0]+k}, v{STR[4]+k}')
    for k in range(3):
        st.append(f'v_mov_b32 v{60+k}, v{56+k}')
    st.append(f's_mov_b32 {T0}, {fbits(1/512)}')
    st.append(f's_mov_b32 {T1}, {fbits(1e-5)}')
    for k in range(3):
        st.append(f'v_permlane32_swap_b32 v{56+k}, v{60+k}')
    st += f'''v_mul_f32 v64, {T0}, v56
v_mul_f32 v65, v64, v64
v_fma_f32 v65, v60, {T0}, -v65
v_max_f32 v65, 0, v65
v_add_f32 v65, {T1}, v65
v_rsq_f32 v66, v65
v_fma_f32 v57, -v64, {S_CG}, v57
v_mul_f32 v67, v65, v66
v_fma_f32 v57, v57, v66, {S_CS}
v_mul_f32 v57, {T0}, v57
v_mul_f32 v68, {S_CGG}, v64
v_fma_f32 v68, v58, -2.0, v68
v_fma_f32 v68, v68, v64, v61
v_fma_f32 v62, -v64, {S_CGS}, v62
v_add_f32 v62, v62, v62
v_fma_f32 v68, v68, v66, v62
v_fma_f32 v68, v68, v66, {S_CSS}
v_mul_f32 v69, v57, v57
v_fma_f32 v68, v68, {T0}, -v69
v_max_f32 v68, 0, v68
v_add_f32 v68, {T1}, v68
v_rsq_f32 v69, v68
v_sub_f32 v96, 0, v64
v_mul_f32 v98, -v57, v67
v_mul_f32 v68, v68, v69
v_mul_f32 v69, v69, v66
v_mul_f32 v99, v68, v67
v_mul_f32 v100, {fbits(P1C)}, v69
v_mul_f32 v101, v69, v69
v_mul_f32 v101, v101, v69
v_mul_f32 v101, {fbits(P3C)}, v101
v_mov_b32 v102, v99
ds_write_b128 v23, v[100:103]
v_cvt_pk_bf16_f32 v56, v96, v67
v_cvt_pk_bf16_f32 v57, v98, v99
v_lshlrev_b32 v60, 16, v56
v_and_b32 v61, {S_HI}, v56
v_lshlrev_b32 v62, 16, v57
v_and_b32 v63, {S_HI}, v57
v_sub_f32 v60, v96, v60
v_sub_f32 v61, v67, v61
v_sub_f32 v62, v98, v62
v_sub_f32 v63, v99, v63
v_cvt_pk_bf16_f32 v58, v60, v61
v_cvt_pk_bf16_f32 v59, v62, v63
v_cndmask_b32 v58, v58, 0, {S_HALF}
v_cndmask_b32 v59, v59, 0, {S_HALF}
ds_write_b128 v22, v[56:59]'''.split('\n')

    def gelu(i):
        acc = 40 + 16 * (i & 1)
        l = []
        for gq in range(4):
            t = 96 + 4 * (gq & 1)
            E = range(4)
            x = lambda e: acc + 4 * gq + e
            l += [f'v_mul_f32 v{t+e}, v{x(e)}, v{x(e)}' for e in E]
            l += [f'v_fma_f32 v{t+e}, v{t+e}, v113, v112' for e in E]
            l += [f'v_mul_f32 v{t+e}, v{t+e}, v{x(e)}' for e in E]
            l += [f'v_exp_f32 v{t+e}, v{t+e}' for e in E]
            l += [f'v_fma_f32 v{t+e}, v{t+e}, v114, v114' for e in E]
            l += [f'v_rcp_f32 v{t+e}, v{t+e}' for e in E]
            l += [f'v_mul_f32 v{t+e}, v{t+e}, v{x(e)}' for e in E]
            l += [f'v_cvt_pk_bf16_f32 v{116+2*gq+e}, v{t+2*e}, v{t+2*e+1}' for e in range(2)]
            if gq & 1:
                if gq == 1:
                    l.append(f's_mov_b32 {T2}, {114688*i}')
                l.append(('I', f'buffer_store_dwordx4 {v(116+4*(gq>>1),4)}, v19, {sWS}, {T2} offen offset:{1024*(gq>>1)}{sc}', f'hh{i}'))
        return l

    def hflag(i):
        return [('wait', (f'hh{i}',)), f'buffer_store_dword v3, v20, {sWS}, 0 offen offset:{256*i}{sc}']

    def scal(i):
        return [f'ds_read_b128 v[112:115], v18 offset:{512*i}']

    NR = 33 * 4

    def rd(n):
        i, ks = divmod(n, 33)
        b = 72 + 4 * (n % 6)
        if ks == 32:
            return f'ds_read_b128 {v(b,4)}, v17 offset:{1024*i}'
        off = ASLOT[i] + 1024 * ks
        return f'ds_read_b128 {v(b,4)}, {"v16" if off >= 65536 else "v5"} offset:{off & 65535}'
    gate = {32: 1, 66: 2, 99: 3}
    after = {}
    for n in range(NR):
        pos = n - 5
        for n0 in gate:
            if n0 <= n < n0 + 3:
                pos = n0 - 3
        after.setdefault(max(pos, -1), []).append(n)
    for n in after[-1]:
        p(rd(n))
    fills = {0: (a_dma(2) + w2_dma(g, 0, L_W2) + g.touch(sW2, 3, 1), st, 0, 28),
             1: (scal(0) + a_dma(3), gelu(0) + scal(1), 1, 33),
             2: ([], gelu(1) + scal(2), 1, 33),
             3: ([], gelu(2) + scal(3), 1, 33)}
    for i in range(4):
        pre, fl, s0, s1 = fills[i]
        if i == 0:
            fl = pre + fl
        elif i == 1:
            fl = pre + fl
        elif i == 2:
            h = len(fl) // 2
            fl = fl[:h] + hflag(0) + fl[h:] + [('wait', ('w2r0',))] + w2_tr(0)
        else:
            h = len(fl) // 2
            fl = [('I', 's_waitcnt lgkmcnt(0)', None)] + w2_dma(g, 1, L_W2) + fl[:h] + hflag(1) + fl[h:]
        main = []
        for ks in range(33):
            n = 33 * i + ks
            acc = v(40 + 16 * (i & 1), 16)
            A = v(128 + 4 * ks, 4) if ks < 32 else 'v[124:127]'
            grp = [f'v_mfma_f32_32x32x16_bf16 {acc}, {A}, {v(72+4*(n%6),4)}, {acc if ks else 0}']
            for m in after.get(n, []):
                if m in gate:
                    grp.append(('wait', (f'A{gate[m]}',)))
                    if gate[m] == 1:
                        grp.append('s_waitcnt lgkmcnt(0)')
                    grp.append('s_barrier')
                grp.append(rd(m))
            main.append(grp)
        p.add(weave(main, fl, s0, s1))
    g.ts(10)
    p.add(gelu(3))
    p.add(hflag(2))
    p.wait('w2r1')
    p.add(w2_tr(1))
    p.add(hflag(3))
    g.ts(11)
    p.label('P4' + sfx)
    if g.stop <= 3:
        p(f's_branch FIN{sfx}')
    p('v_min_u32 v13, 13, v0')
    p(f's_mul_i32 {T0}, {S_W}, 56')
    p(f's_lshl_b32 {T1}, {S_RG}, 9')
    p(f's_add_u32 {T0}, {T0}, {T1}')
    p(f's_add_u32 {T0}, {T0}, {WS_F3}')
    p(f'v_lshl_add_u32 v13, v13, 2, {T0}')
    p(f's_mul_i32 {T3}, {S_RG}, {2*114688}')
    p(f's_mul_i32 {T1}, {S_W}, {28*1024}')
    p(f's_add_u32 {T3}, {T3}, {T1}')
    p(f's_add_u32 {T3}, {T3}, {WS_HH}')
    p('s_waitcnt lgkmcnt(0)')
    p('s_barrier')
    g.poll([f'buffer_load_dword v4, v13, {sWS}, 0 offen sc1'], ['v4'])
    g.ts(12)
    f3 = f'buffer_load_dword v4, v13, {sWS}, 0 offen offset:256 sc1'

    def hld(n):
        rt, ks = divmod(n, 28)
        l = []
        if ks % 4 == 0:
            l.append(f's_add_u32 {T2}, {T3}, {114688*rt + 1024*ks}')
        l.append(f'buffer_load_dwordx4 {v(120+4*(n%34),4)}, v5, {sWS}, {T2} offen offset:{1024*(ks&3)} sc1')
        return l
    for n in range(14):
        p.add(hld(n))
    p.add(w2_dma(g, 2, L_W2))
    p(f3)
    p(f's_add_u32 {T2}, {T3}, {1024*12}')
    for n in range(14, 21):
        p.add(hld(n))
    p.add(w2_dma(g, 3, 0))
    p(f's_add_u32 {T2}, {T3}, {1024*20}')
    for n in range(21, 28):
        p.add(hld(n))
    prep = [f'v_accvgpr_read_b32 v{108+k}, a{240+k}' for k in range(4)]
    prep += [f'v_accvgpr_read_b32 v{116+k}, a{244+k}' for k in range(4)]
    unpack(prep, 104, 108, 4)
    unpack(prep, 112, 116, 4)
    for qq in range(1, 4):
        prep.append(f's_xor_b32 {T0}, {S_W}, {qq}')
        prep.append(f's_mul_i32 {T0}, {T0}, 6144')
        prep.append(f's_add_u32 {T0}, {T0}, {2048*(qq-1)}')
        prep.append(f'v_add_u32 v{15+qq}, {T0}, v5')
    prep.append(f's_mul_i32 {T0}, {S_W}, 6144')
    prep.append(f'v_add_u32 v19, {T0}, v5')
    prep.append('v_and_b32 v20, 31, v0')
    prep.append(f'v_lshl_add_u32 v20, v20, 1, {S_R0}')
    prep.append('v_lshlrev_b32 v20, 10, v20')
    prep.append('v_lshrrev_b32 v21, 5, v0')
    prep.append('v_lshl_add_u32 v20, v21, 4, v20')
    prep.append(f's_lshl_b32 {T0}, {S_J}, 7')
    prep.append(f's_lshl_b32 {T1}, {S_W}, 5')
    prep.append(f's_add_u32 {T0}, {T0}, {T1}')
    prep.append(f'v_add_u32 v20, {T0}, v20')
    p.add(prep)

    def mm(n):
        rt, ks = divmod(n, 28)
        return [f'v_mfma_f32_32x32x16_bf16 {v(40+32*rt+16*nt,16)}, {a((ks*2+nt)*4,4)}, {v(120+4*(n%34),4)}, {v(40+32*rt+16*nt,16) if ks else 0}' for nt in range(2)]

    def rwrite(rt):
        l = []
        for qq in range(1, 4):
            for ii in range(2):
                l.append(f'ds_write_b128 v{15+qq}, {v(40+32*rt+8*qq+4*ii,4)} offset:{L_RB[rt] + 1024*ii}')
        return l

    def rread(rt, dst):
        return [f'ds_read_b128 {v(dst+4*k,4)}, v19 offset:{L_RB[rt] + 1024*k}' for k in range(6)]

    def final(rt, src):
        acc = 40 + 32 * rt
        l = []
        for e in range(0, 8, 2):
            l.append(f'v_pk_add_f32 {v(acc+e,2)}, {v(acc+e,2)}, {v(112+e,2)}')
        for e in range(0, 8, 2):
            l.append(f'v_pk_add_f32 {v(src+e,2)}, {v(src+e,2)}, {v(src+8+e,2)}')
        for e in range(0, 8, 2):
            l.append(f'v_pk_add_f32 {v(acc+e,2)}, {v(acc+e,2)}, {v(src+16+e,2)}')
        for e in range(0, 8, 2):
            l.append(f'v_pk_add_f32 {v(acc+e,2)}, {v(acc+e,2)}, {v(src+e,2)}')
        for e in range(0, 8, 2):
            l.append(f'v_pk_fma_f32 {v(acc+e,2)}, {v(acc+e,2)}, {v(104+e,2)}, {v(24+8*rt+e,2)}')
        for e in range(4):
            l.append(f'v_cvt_pk_bf16_f32 v{acc+e}, v{acc+2*e}, v{acc+2*e+1}')
        l.append(f'v_permlane32_swap_b32 v{acc}, v{acc+2}')
        l.append(f'v_permlane32_swap_b32 v{acc+1}, v{acc+3}')
        l.append(f'buffer_store_dwordx4 {v(acc,4)}, v20, {sOUT}, 0 offen offset:{1024*rt}')
        return l

    for n in range(12):
        p.add(mm(n))
    p.wait('w2r2')
    m = mm(12) + mm(13)
    p.add(weave(m, w2_tr(2)))
    g.recheck([f3], ['v4'])
    p(f'v_subrev_u32 v11, {L_W2}, v11')
    p(f'v_subrev_u32 v12, {L_W2}, v12')
    nxt = 28
    for n in range(14, 56):
        fl = []
        while nxt < 56 and nxt <= n - 1 + 34 and len(fl) < 8:
            fl += hld(nxt); nxt += 1
        if n == 19:
            fl += [('wait', ('w2r3',))] + w2_tr(3)[:14]
        if n == 20:
            fl += w2_tr(3)[14:]
        if n == 29:
            fl += rwrite(0)
        if n == 33:
            fl += ['s_waitcnt lgkmcnt(0)', 's_barrier'] + rread(0, 48)
        if 35 <= n < 42:
            f = final(0, 48)
            k = (len(f) + 6) // 7
            fl += f[(n - 35) * k:(n - 34) * k]
        p.add(weave(mm(n), fl))
    g.ts(13)
    p.add(rwrite(1))
    p('s_waitcnt lgkmcnt(0)')
    p('s_barrier')
    p.add(rread(1, 80))
    p.add(final(1, 80))
    finish(g, sfx)
    p.label('IDLE' + sfx)
    p.restore('idle' + sfx)
    p('s_waitcnt vmcnt(0) lgkmcnt(0)')
    p('s_barrier')
    for R in range(2):
        p.add(w2_dma(g, R, L_W2))
        p('s_waitcnt vmcnt(0)')
        p.add(w2_tr(R))
        p('s_waitcnt lgkmcnt(0)')
    L = p.newlab('noE')
    p(f's_lshl_b32 {T0}, {S_Q}, 3')
    p(f's_add_u32 {T0}, {T0}, {S_XG}')
    p(f's_cmp_eq_u32 {T0}, 248')
    p(f's_cbranch_scc0 {L}')
    p(f's_lshl_b32 {T2}, {S_W}, 9')
    p(f's_add_u32 {T2}, {T2}, {WS_HELLO}')
    p(f'v_lshl_add_u32 v13, v0, 3, {T2}')
    g.poll([f'buffer_load_dwordx2 v[40:41], v13, {sWS}, 0 offen sc1'], ['v41'])
    p('s_barrier')
    p('v_mov_b32 v13, 0')
    p(f'buffer_store_dword v3, v13, {sWS}, 0 offen sc1')
    p.label(L)
    p('s_waitcnt vmcnt(0) lgkmcnt(0)')
    p(f's_branch P4{sfx}')
```

```python
import sys, struct
from gcore import Prog, weave

KNAME = 'adaLN_cond__sliding_local_dilated__mixer_channel_mlp__prompt_kernel'

WS_E = 0
WS_HELLO = 4096
WS_MOD = 8192
WS_F1 = 24576
WS_F2 = 28672
WS_F3 = 32768
WS_TS = 65536
WS_ST = 0x80000
WS_O = 0x100000
WS_XG = 0x300000
WS_HH = 0x800000
WS_SIZE = 0x1000000

BLK = 1056
SLOT = [0, 50688, 101376]
HREG = [50688, 71168, 101376, 133120]
L_P0 = 156160
L_TB = 157440
L_GS = L_TB
L_W1 = 67584
L_W2 = 98304
L_CF = L_TB
L_SC = L_TB + 4096
L_RB = [0, 24576]
L_X1 = 49152
LDS_SIZE = 163840

sX, sWQ, sWO, sW1, sB1, sW2, sB2, sC, sWM, sOUT, sWS = [f's[{i}:{i+3}]' for i in range(4, 48, 4)]
S_XG, S_Q, S_RG, S_J, S_W, S_NON = 's48', 's49', 's50', 's51', 's52', 's53'
T0, T1, T2, T3 = 's54', 's55', 's56', 's57'
S_SPIN, S_R0, S_S14, S_RGB = 's58', 's59', 's60', 's61'
S_CG, S_CGG, S_CS, S_CSS, S_CGS = 's62', 's63', 's64', 's65', 's66'
S_HI = 's67'
S_M0 = 's68'
S_XCC = 's69'
S_HALF = 's[2:3]'
TS0 = 70


def v(i, n=1):
    return f'v{i}' if n == 1 else f'v[{i}:{i+n-1}]'


def a(i, n=1):
    return f'a{i}' if n == 1 else f'a[{i}:{i+n-1}]'


def fbits(x):
    return '0x%08x' % struct.unpack('<I', struct.pack('<f', x))[0]


LOG2E = 1.4426950408889634


class Gen:
    def __init__(self, stop=99, ts=False, spin=200000, opts=None):
        self.p = Prog()
        self.stop = stop
        self.ts_on = ts
        self.spin = spin
        self.o = opts or {}

    def ts(self, i):
        if self.ts_on:
            self.p(f's_memtime s[{TS0+2*i}:{TS0+2*i+1}]')

    def dma(self, vaddr, srd, m0base, lds, goff, imm=0, tag=None, flags=''):
        l = []
        l.append(f's_add_u32 m0, {m0base}, {lds - imm}' if m0base else f's_mov_b32 m0, {lds - imm}')
        l.append(goff[0])
        off = f' offset:{imm}' if imm else ''
        l.append(('I', f'buffer_load_dwordx4 {vaddr}, {srd}, {goff[1]} offen{off}{flags} lds', tag))
        return l

    def poll(self, loads, checks):
        p = self.p
        L = p.newlab('poll'); D = p.newlab('pdone')
        p(f's_mov_b32 {S_SPIN}, {self.spin}')
        p.label(L)
        for t in loads:
            p(t)
        p('s_waitcnt vmcnt(0)')
        self.check(checks)
        p(f's_cbranch_vccz {D}')
        p(f's_sub_u32 {S_SPIN}, {S_SPIN}, 1')
        p(f's_cbranch_scc0 {L}')
        p.label(D)

    def check(self, checks):
        p = self.p
        p(f'v_cmp_ne_u32 vcc, {S_NON}, {checks[0]}')
        for c in checks[1:]:
            p(f'v_cmp_ne_u32 s[{T0[1:]}:{T1[1:]}], {S_NON}, {c}')
            p(f's_or_b64 vcc, vcc, s[{T0[1:]}:{T1[1:]}]')

    def recheck(self, loads, checks):
        p = self.p
        D = p.newlab('ok')
        self.check(checks)
        p(f's_cbranch_vccz {D}')
        p.save(D)
        self.poll(loads, checks)
        p.label(D)
        p.restore(D)

    def prologue(self):
        p = self.p
        p('s_cmp_ge_u32 s2, 256')
        p('s_cbranch_scc1 END')
        for off, r in ((96, 44), (64, 32), (72, 36), (0, 4), (8, 8), (16, 12), (32, 16), (40, 20), (48, 24), (56, 28), (80, 40)):
            p(f's_load_dwordx2 s[{r}:{r+1}], s[0:1], {off}')
        self.ts(0)
        p(f's_and_b32 {S_XG}, s2, 7')
        p(f's_lshr_b32 {S_Q}, s2, 3')
        p('v_lshrrev_b32 v1, 6, v0')
        p('v_and_b32 v0, 63, v0')
        p(f's_getreg_b32 {S_XCC}, hwreg(HW_REG_XCC_ID)')
        p(f'v_readfirstlane_b32 {S_W}, v1')
        p(f's_and_b32 {S_XCC}, {S_XCC}, 15')
        p(f's_lshr_b32 {T0}, {S_Q}, 3')
        p(f's_lshl_b32 {S_RG}, {S_XG}, 2')
        p(f's_add_u32 {S_RG}, {S_RG}, {T0}')
        p(f's_and_b32 {S_J}, {S_Q}, 7')
        p(f's_lshl_b32 {S_R0}, {S_RG}, 6')
        p(f's_mov_b32 {S_HI}, 0xffff0000')
        p('s_mov_b32 s2, 0')
        p('s_mov_b32 s3, -1')
        for r, n in ((44, WS_SIZE), (32, 1024), (36, 512 * 6144), (4, 2048 * 1024), (8, 512 * 3072), (12, 512 * 1024),
                     (16, 512 * 3584), (20, 3584), (24, 1792 * 1024), (28, 1024), (40, 2048 * 1024)):
            p(f's_mov_b32 s{r+2}, {n}')
            p(f's_mov_b32 s{r+3}, 0x00020000')
        p(f's_cmp_ge_u32 {S_Q}, 14')
        p(f's_cselect_b32 {T0}, 14, 0')
        p(f's_cselect_b32 {T1}, 2, 0')
        p(f's_sub_u32 {S_S14}, {S_Q}, {T0}')
        p(f's_lshl_b32 {S_RGB}, {S_XG}, 2')
        p(f's_add_u32 {S_RGB}, {S_RGB}, {T1}')
        p('v_lshlrev_b32 v5, 4, v0')
        p('v_mov_b32 v10, 0')
        p('v_bfrev_b32 v244, 1')
        p('s_waitcnt lgkmcnt(0)')
        p(f'buffer_load_dword v10, v10, {sWS}, 0 offen sc1', tag='E')

    def p0_addr(self):
        p = self.p
        p(f's_lshr_b32 {T0}, {S_Q}, 2')
        p(f's_lshl_b32 {T0}, {T0}, 3')
        p(f's_add_u32 {T0}, {T0}, {S_XG}')
        p(f's_lshl_b32 {T0}, {T0}, 2')
        p(f's_and_b32 {T1}, {S_Q}, 3')
        p(f's_add_u32 {T3}, {T0}, {T1}')
        p(f's_lshl_b32 {T1}, {S_W}, 5')
        p('v_lshrrev_b32 v241, 1, v0')
        p(f'v_add_u32 v241, {T1}, v241')
        p('v_lshlrev_b32 v242, 3, v241')
        p('v_mul_u32_u24 v241, 24576, v241')
        p('v_and_b32 v243, 1, v0')
        p('v_lshl_add_u32 v241, v243, 4, v241')
        p(f's_lshl_b32 {T0}, {T3}, 5')
        p(f'v_add_u32 v241, {T0}, v241')

    def p0_loads(self):
        p = self.p
        self.p0_addr()
        p(f'buffer_load_dwordx2 v[216:217], v242, {sC}, 0 offen')
        for m in range(4):
            if m:
                p(f's_mov_b32 {T0}, {6144*m}')
            p(f'buffer_load_dwordx4 {v(200+4*m,4)}, v241, {sWM}, {T0 if m else 0} offen')
        p(f's_lshl_b32 {T0}, {T3}, 6')
        p(f's_add_u32 {T0}, {T0}, {WS_MOD}')
        p(f's_lshl_b32 {T1}, {S_W}, 6')
        p(f'v_add_u32 v243, {T1}, v0')
        p('v_cmp_gt_u32 vcc, 8, v243')
        p(f'v_lshl_add_u32 v242, v0, 3, {T0}')
        p('v_bfrev_b32 v243, 1')
        p('v_cndmask_b32 v244, v243, v242, vcc')
        p('v_lshrrev_b32 v242, 4, v0')
        p('v_and_b32 v243, 1, v242')
        p('v_lshrrev_b32 v242, 1, v242')
        p('v_lshl_add_u32 v242, v243, 1, v242')
        p('v_and_b32 v243, 1, v0')
        p('v_lshl_add_u32 v242, v243, 3, v242')
        p(f's_add_u32 {T1}, {T1}, {L_P0}')
        p(f'v_lshl_add_u32 v245, v242, 2, {T1}')
        p('v_and_b32 v242, 7, v0')
        p('v_lshlrev_b32 v246, 3, v242')
        p(f'v_add_u32 v246, {L_P0}, v246')

    def p0_compute(self):
        p = self.p
        p('v_lshlrev_b32 v234, 16, v216')
        p(f'v_and_b32 v235, {S_HI}, v216')
        p('v_lshlrev_b32 v236, 16, v217')
        p(f'v_and_b32 v237, {S_HI}, v217')
        for m in range(4):
            p(f'v_mul_f32 v{218+m}, {fbits(-LOG2E)}, v{234+m}')
        for m in range(4):
            p(f'v_exp_f32 v{218+m}, v{218+m}')
        for m in range(4):
            p(f'v_add_f32 v{218+m}, 1.0, v{218+m}')
        for m in range(4):
            p(f'v_rcp_f32 v{218+m}, v{218+m}')
        for m in range(4):
            p(f'v_mul_f32 v{234+m}, v{234+m}, v{218+m}')
        for m in range(4):
            p(f'v_cvt_pk_bf16_f32 v{218+2*m}, v{234+m}, 0')
            p(f'v_cvt_pk_bf16_f32 v{219+2*m}, 0, v{234+m}')
        for m in range(4):
            for e in range(8):
                c = '0' if m == 0 else f'v{226+e}'
                p(f'v_dot2_f32_bf16 v{226+e}, v{200+4*m+e//2}, v{218+2*m+(e&1)}, {c}')
        for e in (0, 2, 4, 6):
            p(f'v_permlane32_swap_b32 v{226+e}, v{227+e}')
        for e in (0, 2, 4, 6):
            p(f'v_add_f32 v{226+e}, v{226+e}, v{227+e}')
        p('v_permlane16_swap_b32 v226, v228')
        p('v_permlane16_swap_b32 v230, v232')
        p('v_add_f32 v226, v226, v228')
        p('v_add_f32 v230, v230, v232')
        for r in (8, 4, 2):
            p(f'v_add_f32_dpp v226, v226, v226 row_ror:{r} row_mask:0xf bank_mask:0xf')
            p(f'v_add_f32_dpp v230, v230, v230 row_ror:{r} row_mask:0xf bank_mask:0xf')
        p('ds_write2_b32 v245, v226, v230 offset1:4')
        p('s_waitcnt lgkmcnt(0)')
        p('s_barrier')
        for w in range(4):
            p(f'ds_read_b64 {v(226+2*w,2)}, v246 offset:{64*w}')
        p('v_pk_add_f32 v[226:227], v[226:227], v[228:229]')
        p('v_pk_add_f32 v[230:231], v[230:231], v[232:233]')
        p('v_pk_add_f32 v[226:227], v[226:227], v[230:231]')
        p('v_cvt_pk_bf16_f32 v226, v226, v227')
        p(f'v_mov_b32 v227, {S_NON}')
        p(f'buffer_store_dwordx2 v[226:227], v244, {sWS}, 0 offen sc1')

    def cond(self, cmp, fn, group=None):
        p = self.p
        L = p.newlab('skip')
        p(cmp)
        p(f's_cbranch_scc0 {L}')
        p.begin_cond(group)
        fn()
        p.end_cond()
        p.label(L)

    def wswz(self, dst, tmp, rowbytes):
        p = self.p
        p(f'v_lshrrev_b32 {tmp}, 2, v0')
        p(f'v_and_b32 {tmp}, 4, {tmp}')
        p(f'v_and_b32 {dst}, 7, v0')
        p(f'v_xor_b32 {dst}, {dst}, {tmp}')
        p(f'v_lshlrev_b32 {dst}, 4, {dst}')
        p(f'v_lshrrev_b32 {tmp}, 3, v0')
        p(f'v_mul_u32_u24 {tmp}, {rowbytes}, {tmp}')
        p(f'v_add_u32 {dst}, {dst}, {tmp}')

    def traddr(self, dst, t1, t2, rowpart, seg):
        p = self.p
        p(f'v_bfe_u32 {t1}, v0, 1, 1')
        p(f'v_lshl_add_u32 {t1}, {seg}, 1, {t1}')
        p(f'v_lshrrev_b32 {t2}, 1, v0')
        p(f'v_and_b32 {t2}, 4, {t2}')
        p(f'v_xor_b32 {t1}, {t1}, {t2}')
        p(f'v_lshlrev_b32 {t1}, 4, {t1}')
        p(f'v_and_b32 {t2}, 1, v0')
        p(f'v_lshl_add_u32 {t1}, {t2}, 3, {t1}')
        p(f'v_bfe_u32 {t2}, v0, 2, 2')
        p(f'v_lshl_add_u32 {t1}, {t2}, 7, {t1}')
        p(f'v_add_u32 {dst}, {t1}, {rowpart}')

    def p1_loads(self):
        p = self.p
        p(f's_lshl_b32 {T0}, {S_W}, 2')
        p('v_lshrrev_b32 v11, 4, v0')
        p(f'v_add_u32 v11, {T0}, v11')
        p('v_and_b32 v12, 15, v0')
        p(f'v_lshl_add_u32 v2, v11, 1, {S_R0}')
        p('v_lshlrev_b32 v2, 10, v2')
        p('v_lshl_add_u32 v2, v12, 4, v2')
        p('v_and_b32 v1, 7, v11')
        p('v_lshlrev_b32 v1, 1, v1')
        p('v_lshrrev_b32 v13, 3, v11')
        p(f's_sub_u32 {T0}, {S_R0}, 16')
        p(f'v_add3_u32 v1, v1, v13, {T0}')
        p('v_lshlrev_b32 v1, 10, v1')
        p('v_lshl_add_u32 v1, v12, 4, v1')
        p(f's_mov_b32 {T1}, 32768')
        for T in range(5):
            for c in range(4):
                r = 96 + 4 * (5 * c + T)
                if T == 0:
                    p(f'buffer_load_dwordx4 {v(r,4)}, v1, {sX}, 0 offen offset:{256*c}')
                else:
                    Tp = T - 1
                    p(f'buffer_load_dwordx4 {v(r,4)}, v2, {sX}, {T1 if Tp & 1 else 0} offen offset:{256*c + 1024*(Tp>>1)}')
        p('v_lshrrev_b32 v13, 2, v12')
        p('v_and_b32 v14, 3, v12')
        p('v_and_b32 v15, 7, v12')
        p('v_xor_b32 v15, v15, v11')
        p('v_lshlrev_b32 v15, 4, v15')
        p('v_lshl_add_u32 v15, v14, 8, v15')
        p('v_mul_u32_u24 v13, 5120, v13')
        p('v_add_u32 v6, v13, v15')
        p(f'v_add_u32 v6, {HREG[0]}, v6')
        p('v_lshrrev_b32 v13, 4, v0')
        p('v_xor_b32 v14, v12, v13')
        p('v_lshlrev_b32 v14, 4, v14')
        p('v_lshl_add_u32 v7, v13, 8, v14')
        p(f'v_add_u32 v7, {HREG[0]}, v7')
        p('v_xor_b32 v8, 64, v7')
        p('v_lshlrev_b32 v9, 5, v12')
        p(f'v_add_u32 v9, {L_GS}, v9')
        self.wswz('v3', 'v14', 3072)
        p(f's_lshl_b32 {T0}, {S_J}, 7')
        p(f's_mul_i32 {T1}, {S_W}, {4*24576}')
        p(f's_add_u32 {T0}, {T0}, {T1}')
        p(f'v_add_u32 v3, {T0}, v3')
        p(f's_mul_i32 {S_M0}, {S_W}, {4*BLK}')
        for c in range(3):
            for i in range(4):
                p(f's_mov_b32 {T0}, {(16*c+i)*24576}')
                for mat in range(3):
                    p(f's_add_u32 m0, {S_M0}, {SLOT[c] + (mat*16+i)*BLK - mat*1024}')
                    p(f'buffer_load_dwordx4 v3, {sWQ}, {T0} offen offset:{mat*1024} lds', tag=f'w{c}')
        p(f'v_mul_u32_u24 v13, {BLK}, v13')
        self.traddr('v4', 'v14', 'v15', 'v13', S_W)

    def nonce_hello(self):
        p = self.p
        p(f'v_readfirstlane_b32 {S_NON}, v10')
        p(f's_mul_i32 {S_NON}, {S_NON}, 0x9e3779b1')
        p(f's_add_u32 {S_NON}, {S_NON}, 0x7f4a7c15')
        p(f's_lshl_b32 {T0}, {S_XG}, 5')
        p(f's_add_u32 {T0}, {T0}, {S_Q}')
        p(f's_lshl_b32 {T0}, {T0}, 3')
        p(f's_add_u32 {T0}, {T0}, {WS_HELLO}')
        p(f'v_mov_b32 v10, {S_XCC}')
        p(f'v_mov_b32 v11, {S_NON}')
        p(f'v_mov_b32 v12, {T0}')
        p(f'buffer_store_dwordx2 v[10:11], v12, {sWS}, 0 offen sc1')

    def p1_c3_loads(self):
        p = self.p
        for i in range(4):
            p(f's_mov_b32 {T0}, {(48+i)*24576}')
            for mat in range(3):
                p(f'buffer_load_dwordx4 {a(144+4*(mat*4+i),4)}, v3, {sWQ}, {T0} offen offset:{mat*1024}')

    def p1_stats(self):
        p = self.p
        p(f's_mov_b32 {T2}, 0x3f803f80')
        for T in range(5):
            first = True
            for c in range(4):
                r = 96 + 4 * (5 * c + T)
                for e in range(4):
                    p(f'v_dot2_f32_bf16 v{176+2*T}, v{r+e}, {T2}, {0 if first else v(176+2*T)}')
                    p(f'v_dot2_f32_bf16 v{177+2*T}, v{r+e}, v{r+e}, {0 if first else v(177+2*T)}')
                    first = False
        for rr in (8, 4, 2, 1):
            for k in range(10):
                p(f'v_add_f32_dpp v{176+k}, v{176+k}, v{176+k} row_ror:{rr} row_mask:0xf bank_mask:0xf')
        p(f's_mov_b32 {T0}, {fbits(1/512)}')
        p(f's_mov_b32 {T1}, {fbits(1e-5)}')
        for T in range(5):
            p(f'v_mul_f32 v{186+T}, {T0}, v{176+2*T}')
        for T in range(5):
            p(f'v_mul_f32 v{176+2*T}, v{186+T}, v{186+T}')
        for T in range(5):
            p(f'v_fma_f32 v{176+2*T}, v{177+2*T}, {T0}, -v{176+2*T}')
        for T in range(5):
            p(f'v_max_f32 v{176+2*T}, 0, v{176+2*T}')
        for T in range(5):
            p(f'v_add_f32 v{176+2*T}, {T1}, v{176+2*T}')
        for T in range(5):
            p(f'v_rsq_f32 v{176+2*T}, v{176+2*T}')
        for T in range(5):
            p(f'v_mul_f32 v{177+2*T}, -v{186+T}, v{176+2*T}')
        for gi in range(20):
            T = gi % 5
            n = 16 + 8 * gi; r = 96 + 4 * gi
            for e in range(4):
                p(f'v_lshlrev_b32 v{n+2*e}, 16, v{r+e}')
                p(f'v_and_b32 v{n+2*e+1}, {S_HI}, v{r+e}')
            for e in range(4):
                p(f'v_pk_fma_f32 {v(n+2*e,2)}, {v(n+2*e,2)}, {v(176+2*T,2)}, {v(176+2*T,2)} op_sel:[0,0,1] op_sel_hi:[1,0,1]')

    def p1_masks(self):
        p = self.p
        p('v_and_b32 v10, 15, v0')
        p('v_lshrrev_b32 v11, 4, v0')
        p('v_lshlrev_b32 v11, 2, v11')
        p('v_sub_u32 v10, v10, v11')
        p(f'v_mov_b32 v12, {fbits(-1e30)}')
        p(f's_cmp_eq_u32 {S_R0}, 0')
        p(f's_cselect_b32 {T2}, -100, 0')
        p(f's_mov_b32 {T3}, 0xffff')
        for var in range(4):
            for i in range(4):
                p(f'v_subrev_u32 v13, {i}, v10')
                if var == 0:
                    p('v_cmp_gt_u32 vcc, 8, v13')
                elif var == 1:
                    p('v_cmp_ge_i32 vcc, -9, v13')
                elif var == 2:
                    p(f'v_add_u32 v14, {i}, v11')
                    p('v_cmp_gt_u32 vcc, 8, v14')
                    p('v_cndmask_b32 v13, 0, v13, vcc')
                    p(f'v_subrev_u32 v13, {T2}, v13')
                    p('v_cmp_ge_i32 vcc, -1, v13')
                else:
                    p(f'v_subrev_u32 v13, {T2}, v13')
                    p('v_cmp_ge_i32 vcc, -9, v13')
                p('v_cndmask_b32 v14, v12, 0, vcc')
                p(f'v_accvgpr_write_b32 {a(192+4*var+i)}, v14')
                if i & 1:
                    p(f'v_mov_b32 v14, {S_HI}')
                    p('v_cndmask_b32 v14, 0, v14, vcc')
                    p('v_or_b32 v14, v14, v15')
                    p(f'v_accvgpr_write_b32 {a(208+2*var+i//2)}, v14')
                else:
                    p(f'v_mov_b32 v15, {T3}')
                    p('v_cndmask_b32 v15, 0, v15, vcc')

    def w_tr(self, c, slotoff):
        l = []
        for ksl in range(4):
            for mat in range(3):
                f = ((4 * c + ksl) * 3 + mat) * 4
                for t in range(2):
                    l.append(f'ds_read_b64_tr_b16 {a(f+2*t,2)}, v4 offset:{(mat*16+4*ksl)*BLK + 512*t}')
        return l

    def p1_wregs(self):
        p = self.p
        p.wait('w0'); p('s_barrier')
        p.add(self.w_tr(0, 0))
        p(f'v_add_u32 v4, {SLOT[1]}, v4')
        p.wait('w1'); p('s_waitcnt lgkmcnt(0)'); p('s_barrier')
        p.add(self.w_tr(1, 0))
        p(f'v_add_u32 v4, {SLOT[1]}, v4')
        p(f'v_add_u32 v13, {S_M0}, v5')
        for mat in range(3):
            for i in range(4):
                p(f'ds_write_b128 v13, {a(144+4*(mat*4+i),4)} offset:{(mat*16+i)*BLK}')
        p.wait('w2'); p('s_waitcnt lgkmcnt(0)'); p('s_barrier')
        p.add(self.w_tr(2, 0))
        p(f'v_subrev_u32 v4, {SLOT[2]}, v4')
        p.add(self.w_tr(3, 0))

    def p1_mod(self):
        p = self.p
        p(f's_lshl_b32 {T2}, {S_W}, 10')
        p(f'v_add_u32 v14, {T2}, v5')
        p(f'v_add_u32 v15, {L_GS}, v14')
        p(f's_cmp_ge_u32 {S_W}, 2')
        p(f's_cselect_b32 {T3}, 1.0, 0')
        p(f's_mov_b32 {T2}, {WS_MOD}')
        self.poll([f'buffer_load_dwordx4 v[192:195], v14, {sWS}, {T2} offen sc1'], ['v193', 'v195'])
        self.ts(2)
        p('v_lshlrev_b32 v196, 16, v192')
        p(f'v_and_b32 v197, {S_HI}, v192')
        p('v_lshlrev_b32 v198, 16, v194')
        p(f'v_and_b32 v199, {S_HI}, v194')
        for e in range(4):
            p(f'v_add_f32 v{196+e}, {T3}, v{196+e}')
        p('v_cvt_pk_bf16_f32 v192, v196, v197')
        p('v_cvt_pk_bf16_f32 v194, v198, v199')
        p('v_lshlrev_b32 v196, 16, v192')
        p(f'v_and_b32 v197, {S_HI}, v192')
        p('v_lshlrev_b32 v198, 16, v194')
        p(f'v_and_b32 v199, {S_HI}, v194')
        p('ds_write_b128 v15, v[196:199]')
        p('s_waitcnt lgkmcnt(0)')
        p('s_barrier')

    GSREG = [200, 176, 176, 56]

    def gs_reads(self, c):
        b = self.GSREG[c]
        return [f'ds_read_b128 {v(b,4)}, v9 offset:{512*c}', f'ds_read_b128 {v(b+4,4)}, v9 offset:{512*c+16}',
                f'ds_read_b128 {v(b+8,4)}, v9 offset:{2048+512*c}', f'ds_read_b128 {v(b+12,4)}, v9 offset:{2048+512*c+16}']

    def conv(self, c, pk=False):
        b = self.GSREG[c]
        l = []
        for T in range(5):
            n = 16 + 40 * c + 8 * T
            if pk:
                for e in range(4):
                    l.append(f'v_pk_fma_f32 {v(n+2*e,2)}, {v(n+2*e,2)}, {v(b+8+2*e,2)}, {v(b+2*e,2)}')
            else:
                for e in range(8):
                    l.append(f'v_fma_f32 v{n+e}, v{n+e}, v{b+8+e}, v{b+e}')
            for e in range(4):
                l.append(f'v_cvt_pk_bf16_f32 v{n+e}, v{n+2*e}, v{n+2*e+1}')
            off = HREG[c] - HREG[c & 2] + T * 1024
            l.append(('I', f'ds_write_b128 v6, {v(n,4)} offset:{off}', 'hw'))
        return l

    def hreads(self, ks):
        c, sl = ks >> 2, ks & 3
        b = 16 + 20 * (ks & 1)
        return [f'ds_read_b128 {v(b+4*T,4)}, {"v8" if sl & 1 else "v7"} offset:{HREG[c]-HREG[c&2] + (sl*5+T)*1024}' for T in range(5)]

    def p1_mfma(self, ks):
        b = 16 + 20 * (ks & 1)
        l = []
        for T in range(5):
            h = v(b + 4 * T, 4)
            W = lambda mat: a((ks * 3 + mat) * 4, 4)
            def mf(acc, A, B):
                l.append(f'v_mfma_f32_16x16x32_bf16 {v(acc,4)}, {A}, {B}, {v(acc,4) if ks else 0}')
            mf(216 + 4 * T, W(1), h)
            if T:
                mf(200 + 4 * (T - 1), W(0), h)
            mf(236 + 4 * T, h, W(2))
        return l

    def touch(self, srd, n, first=0):
        l = []
        for i in range(first, first + n):
            l.append(f's_mov_b32 {T0}, {i*524288}')
            l.append(f'buffer_load_dword v15, v14, {srd}, {T0} offen')
        return l

    def p1_gemm(self):
        p = self.p
        p.add(self.gs_reads(0))
        p.add(self.gs_reads(1))
        p.add(self.conv(0, pk=True))
        p.wait('hw'); p('s_barrier')
        p.add(self.hreads(0))
        p(f's_lshl_b32 {T0}, {S_Q}, 2')
        p(f's_add_u32 {T0}, {T0}, {S_W}')
        p(f's_lshl_b32 {T0}, {T0}, 12')
        p(f'v_lshl_add_u32 v14, v0, 6, {T0}')
        p('v_and_b32 v10, 31, v0')
        p(f's_lshl_b32 {T0}, {S_XG}, 8')
        p(f's_add_u32 {T0}, {T0}, {WS_HELLO}')
        p(f'v_lshl_add_u32 v10, v10, 3, {T0}')
        p(f's_lshl_b32 {T0}, {S_W}, 11')
        p(f's_add_u32 {T0}, {T0}, {WS_MOD + 4096}')
        p(f'v_add_u32 v11, {T0}, v5')
        self.hello_ld = f'buffer_load_dwordx2 v[12:13], v10, {sWS}, 0 offen sc1'
        self.rest_ld = [f'buffer_load_dwordx4 v[192:195], v11, {sWS}, 0 offen sc1',
                        f'buffer_load_dwordx4 v[196:199], v11, {sWS}, 0 offen offset:1024 sc1']
        side = {0: [self.hello_ld] + self.touch(sWO, 1) + self.touch(sW1, 4),
                1: [f'v_accvgpr_read_b32 v{96+i}, a{192+i}' for i in range(12)] + self.rest_ld}
        d = [f's_cmp_ge_u32 {S_Q}, 28', 's_cselect_b32 s18, 0, s18']
        d.append(f's_lshl_b32 {T1}, {S_J}, 7')
        d.append(f's_lshl_b32 {T2}, {S_W}, 17')
        d.append(f's_add_u32 {T1}, {T1}, {T2}')
        d.append(f'v_add_u32 v1, {T1}, v1')
        d.append(f's_mul_i32 {S_M0}, {S_W}, {16*BLK}')
        for i in range(16):
            d += self.dma('v1', sWO, S_M0, i * BLK, (f's_mov_b32 {T0}, {i*8192}', T0), tag='wo')
        d.append(f's_lshl_b32 {T1}, {S_S14}, 8')
        d.append(f's_mul_i32 {T2}, {S_W}, {8*28672}')
        d.append(f's_add_u32 {T1}, {T1}, {T2}')
        d.append(f'v_add_u32 v2, {T1}, v2')
        d.append(f's_lshl_b32 {S_M0}, {S_W}, 13')
        d += self.w1_dma(0)
        d += [f'v_accvgpr_read_b32 v{96+i}, a{192+i}' for i in range(12, 24)]
        d += [f'v_mov_b32 v{120+i}, 0x3f803f80' for i in range(4)]
        for c in range(4):
            cv = self.conv(c + 1) if c < 3 else []
            if c == 1:
                cv = [f'v_add_u32 v6, {HREG[2]-HREG[0]}, v6'] + cv
            if c < 3:
                parts = [cv[:len(cv) // 3], cv[len(cv) // 3: 2 * len(cv) // 3], cv[2 * len(cv) // 3:]]
                if c == 1:
                    parts[2] = parts[2] + self.gs_reads(3)
            else:
                k = len(d) // 4
                parts = [d[:k], d[k:2 * k], d[2 * k:3 * k], d[3 * k:]]
            for sl in range(4):
                ks = 4 * c + sl
                m = self.p1_mfma(ks)
                if sl < 3:
                    p.add(weave(m, self.hreads(ks + 1) + parts[sl]))
                elif c < 3:
                    pre = []
                    if c == 1:
                        pre = [f'v_add_u32 v7, {HREG[2]-HREG[0]}, v7', f'v_add_u32 v8, {HREG[2]-HREG[0]}, v8']
                    p.add(m[:2])
                    p.add(pre)
                    p('s_waitcnt lgkmcnt(0)')
                    p('s_barrier')
                    fill = self.hreads(ks + 1)
                    if c == 0:
                        fill = fill + self.gs_reads(2)
                    fill = fill + side.get(c, [])
                    if c == 2:
                        n = 18
                        fill = fill + d[:n]
                        d = d[n:]
                    p.add(weave(m[2:], fill))
                else:
                    p.add(weave(m, parts[3]))

    def w1_dma(self, rnd):
        l = []
        for i in range(8):
            l.append(f's_mov_b32 {T0}, {(32*rnd+i)*28672}')
            for ch in range(2):
                l.append(f's_add_u32 m0, {S_M0}, {L_W1 + (ch*32+i)*1024 - ch*128}')
                l.append(('I', f'buffer_load_dwordx4 v2, {sW1}, {T0} offen offset:{ch*128} lds', f'w1r{rnd}'))
        return l

    def attention(self):
        p = self.p
        SC = fbits(0.25 * LOG2E)
        for T in range(5):
            for e in range(2):
                p(f'v_cvt_pk_bf16_f32 v{24+2*T+e}, v{216+4*T+2*e}, v{217+4*T+2*e}')
            if T:
                for e in range(2):
                    p(f'v_cvt_pk_bf16_f32 v{16+2*(T-1)+e}, v{200+4*(T-1)+2*e}, v{201+4*(T-1)+2*e}')
        prevK = [0, 1, 0, 3]; prevB = [2, 1, 3, 1]
        for Tq in range(4):
            p(f'v_mfma_f32_16x16x16_bf16 {v(128+4*Tq,4)}, {v(24+2*(Tq+1),2)}, {v(16+2*Tq,2)}, {v(96,4)}')
            p(f'v_mfma_f32_16x16x16_bf16 {v(144+4*Tq,4)}, {v(24+2*prevK[Tq],2)}, {v(16+2*Tq,2)}, {v(96+4*prevB[Tq],4)}')
        for dst, T in ((34, 0), (36, 1), (38, 2), (40, 0), (42, 3), (44, 4)):
            for e in range(2):
                p(f'v_cvt_pk_bf16_f32 v{dst+e}, v{236+4*T+2*e}, v{237+4*T+2*e}')
        p(f's_mov_b32 {T2}, {SC}')
        for Tq in range(4):
            for i in range(4):
                p(f'v_max_f32 v{128+4*Tq+i}, v{128+4*Tq+i}, v{144+4*Tq+i}')
        for Tq in range(4):
            p(f'v_max3_f32 v{160+Tq}, v{128+4*Tq}, v{129+4*Tq}, v{130+4*Tq}')
        for Tq in range(4):
            p(f'v_max_f32 v{160+Tq}, v{160+Tq}, v{131+4*Tq}')
        p('v_permlane32_swap_b32 v160, v161')
        p('v_permlane32_swap_b32 v162, v163')
        p('v_max_f32 v160, v160, v161')
        p('v_max_f32 v162, v162, v163')
        p('v_permlane16_swap_b32 v160, v162')
        p('v_max_f32 v160, v160, v162')
        p(f'v_mul_f32 v160, {T2}, v160')
        p('v_mov_b32 v162, v160')
        p('v_permlane16_swap_b32 v160, v162')
        p('v_mov_b32 v161, v160')
        p('v_mov_b32 v163, v162')
        p('v_permlane32_swap_b32 v160, v161')
        p('v_permlane32_swap_b32 v162, v163')
        for Tq in range(4):
            for i in range(4):
                p(f'v_fma_f32 v{128+4*Tq+i}, v{128+4*Tq+i}, {T2}, -v{160+Tq}')
            for i in range(4):
                p(f'v_exp_f32 v{128+4*Tq+i}, v{128+4*Tq+i}')
        Vop = [34, 36, 40, 42]
        for Tq in range(4):
            for e in range(2):
                p(f'v_cvt_pk_bf16_f32 v{164+2*Tq+e}, v{128+4*Tq+2*e}, v{129+4*Tq+2*e}')
        for Tq in range(4):
            for e in range(2):
                p(f'v_and_b32 v{176+4*Tq+e}, v{164+2*Tq+e}, v{112+2*prevB[Tq]+e}')
                p(f'v_and_b32 v{178+4*Tq+e}, v{164+2*Tq+e}, v{112+e}')
        for Tq in range(4):
            p(f'v_mfma_f32_16x16x32_bf16 {v(144+4*Tq,4)}, {v(120,4)}, {v(176+4*Tq,4)}, 0')
            p(f'v_mfma_f32_16x16x32_bf16 {v(128+4*Tq,4)}, {v(Vop[Tq],4)}, {v(176+4*Tq,4)}, 0')
        p('v_lshrrev_b32 v46, 4, v0')
        p('v_and_b32 v47, 1, v46')
        p('v_lshlrev_b32 v47, 14, v47')
        p('v_lshrrev_b32 v46, 1, v46')
        p('v_lshl_add_u32 v47, v46, 8, v47')
        p('v_and_b32 v46, 15, v0')
        p('v_lshl_add_u32 v47, v46, 4, v47')
        p(f's_lshl_b32 {T2}, {S_W}, 9')
        p(f's_lshl_b32 {T3}, {S_J}, 11')
        p(f's_add_u32 {T2}, {T2}, {T3}')
        p(f's_lshl_b32 {T3}, {S_RG}, 16')
        p(f's_add_u32 {T2}, {T2}, {T3}')
        p(f's_add_u32 {T2}, {T2}, {WS_O}')
        p(f'v_add_u32 v47, {T2}, v47')
        for Tq in range(4):
            p(f'v_rcp_f32 v{144+4*Tq}, v{144+4*Tq}')
        for Tq in range(4):
            for i in range(4):
                p(f'v_mul_f32 v{128+4*Tq+i}, v{128+4*Tq+i}, v{144+4*Tq}')
            for e in range(2):
                p(f'v_cvt_pk_bf16_f32 v{160+2*Tq+e}, v{128+4*Tq+2*e}, v{129+4*Tq+2*e}')
        self.recheck([self.hello_ld], ['v13'])
        p(f'v_cmp_ne_u32 vcc, {S_XCC}, v12')
        for pp in range(2):
            p(f'v_permlane16_swap_b32 v{160+4*pp}, v{162+4*pp}')
            p(f'v_permlane16_swap_b32 v{161+4*pp}, v{163+4*pp}')
        p(f's_mov_b32 {T3}, 32768')

    def build(self):
        p = self.p
        self.prologue()
        self.cond(f's_cmp_lt_u32 {S_Q}, 8', self.p0_loads, 'crit')
        self.p1_loads()
        self.nonce_hello()
        self.cond(f's_cmp_lt_u32 {S_Q}, 8', self.p0_compute, 'crit')
        self.p1_c3_loads()
        p(f's_sub_u32 {T2}, {S_Q}, 8')
        self.cond(f's_cmp_lt_u32 {T2}, 16', self.p0_loads, 'rest')
        self.p1_masks()
        self.wswz('v1', 'v14', 1024)
        self.wswz('v2', 'v14', 3584)
        self.p1_stats()
        self.p1_wregs()
        p(f's_sub_u32 {T2}, {S_Q}, 8')
        self.cond(f's_cmp_lt_u32 {T2}, 16', self.p0_compute, 'rest')
        self.ts(1)
        self.p1_mod()
        self.p1_gemm()
        self.ts(3)
        self.attention()
        force = self.o.get('force')
        p.save('fork')
        if force == 'slow':
            p('s_branch SLOW')
        elif force != 'fast':
            p('s_cbranch_vccnz SLOW')
        from gen2 import tail
        tail(self, '', 'F')
        p.label('SLOW')
        p.restore('fork')
        tail(self, ' sc1', 'S')
        p.label('END')
        p('s_endpgm')
        return p.finalize()


def kernel_file(body, header):
    return header + f""".amdgcn_target "amdgcn-amd-amdhsa--gfx950"
.text
.globl {KNAME}
.p2align 8
.type {KNAME},@function
{KNAME}:
{body}.section .rodata,"a"
.p2align 6
.amdhsa_kernel {KNAME}
  .amdhsa_next_free_vgpr 512
  .amdhsa_next_free_sgpr 102
  .amdhsa_accum_offset 256
  .amdhsa_group_segment_fixed_size 0
  .amdhsa_kernarg_size 104
  .amdhsa_user_sgpr_count 2
  .amdhsa_user_sgpr_kernarg_segment_ptr 1
  .amdhsa_system_sgpr_workgroup_id_x 1
.end_amdhsa_kernel
"""


def make(**kw):
    ref = open('adaLN_cond__sliding_local_dilated__mixer_channel_mlp__prompt.s.ref').read().split('\n')
    hdr = []
    for l in ref:
        if not l.startswith(';'):
            break
        if '@launch' in l:
            l = f'; @launch grid=(256,1,1) block=(256,1,1) lds={LDS_SIZE}'
        hdr.append(l)
    g = Gen(**kw)
    body = g.build()
    return kernel_file(body, '\n'.join(hdr) + '\n'), g


if __name__ == '__main__':
    txt, g = make()
    out = sys.argv[1] if len(sys.argv) > 1 else 'adaLN_cond__sliding_local_dilated__mixer_channel_mlp__prompt.s'
    open(out, 'w').write(txt)
    print(len(txt), g.p.stats)
```
